```python
import torch

def _softmax(x, axis=-1):
    return torch.softmax(x, dim=axis)
def _gelu(x):
    return torch.nn.functional.gelu(x, approximate="tanh")
def _silu(x):
    return torch.nn.functional.silu(x)
def _sigmoid(x):
    return torch.sigmoid(x)
def _layernorm(x, axis=-1, eps=1e-5):
    m = x.mean(dim=axis, keepdim=True)
    v = x.var(dim=axis, keepdim=True, unbiased=False)
    return (x - m) / torch.sqrt(v + eps)
def _scatter_add(tgt, idx, src, axis=0):
    return tgt.clone().index_add_(axis, idx, src)
def _segment_sum(src, seg, n):
    out = torch.zeros((n,) + src.shape[1:], dtype=src.dtype)
    return out.index_add_(0, seg, src)
def _pad(x, pw):
    flat = tuple(v for pair in reversed(pw) for v in pair)
    return torch.nn.functional.pad(x, flat)

kernel_name = 'recurrent_scan__softmax_full_mha__geglu_ffn__prompt'

def setup_inputs():

    _w = (lambda a: (lambda t: t.to(torch.bfloat16) if t.is_floating_point() else t)(torch.as_tensor(a)))
    def _A_setup():
        B, S, D = 1, 2048, 576
        return {
            "x": _w((lambda *s: torch.randn(*s, dtype=torch.bfloat16) * 0.05)(B, S, D)),
            "wqkv": _w((lambda *s: torch.randn(*s, dtype=torch.bfloat16) * 0.05)(D, 3 * D)),
            "wo": _w((lambda *s: torch.randn(*s, dtype=torch.bfloat16) * 0.05)(D, D)),
        }
    _A_in = _A_setup()

    def _B_setup():
        B, S, D, F = 1, 2048, 576, 4608
        return {
            "x": _w((lambda *s: torch.randn(*s, dtype=torch.bfloat16) * 0.05)(B, S, D)),
            "w_gate": _w((lambda *s: torch.randn(*s, dtype=torch.bfloat16) * 0.05)(D, F)),
            "w_up": _w((lambda *s: torch.randn(*s, dtype=torch.bfloat16) * 0.05)(D, F)),
            "w_down": _w((lambda *s: torch.randn(*s, dtype=torch.bfloat16) * 0.05)(F, D)),
        }
    _B_in = _B_setup()

    return {
        "A_x": _A_in["x"],
        "A_wqkv": _A_in["wqkv"],
        "A_wo": _A_in["wo"],
        "B_x": _B_in["x"],
        "B_w_gate": _B_in["w_gate"],
        "B_w_up": _B_in["w_up"],
        "B_w_down": _B_in["w_down"],
    }

def reference(A_x, A_wqkv, A_wo, B_x, B_w_gate, B_w_up, B_w_down):
    def _A_ref(x, wqkv, wo):
        B, S, D = x.shape
        H = 32; Dh = D // H
        qkv = (lambda x, *d: x.permute(*d))((x @ wqkv).reshape(B, S, 3, H, Dh), 2, 0, 3, 1, 4)
        q, k, v = qkv[0], qkv[1], qkv[2]
        scale = Dh ** -0.5
        scores = torch.einsum("bhqd,bhkd->bhqk", q, k) * scale
        p = _softmax(scores, axis=-1)
        o = torch.einsum("bhqk,bhkd->bhqd", p, v)
        return (lambda x, *d: x.permute(*d))(o, 0, 2, 1, 3).reshape(B, S, D) @ wo

    def _B_ref(x, w_gate, w_up, w_down):
        return (_gelu(x @ w_gate) * (x @ w_up)) @ w_down

    x = A_x
    xn = _layernorm(x, axis=-1)
    s = _A_ref(xn, A_wqkv, A_wo)
    g = _silu(_B_ref(xn, B_w_gate, B_w_up, B_w_down))
    return x + s * g
```

```python
import re

def _regs(tok):
    tok = tok.strip()
    neg = tok
    tok = tok.lstrip('-')
    m = re.fullmatch(r'abs\((.*)\)', tok) or re.fullmatch(r'\|(.*)\|', tok)
    if m: tok = m.group(1)
    m = re.fullmatch(r'([vsa])(\d+)', tok)
    if m: return [tok]
    m = re.fullmatch(r'([vsa])\[(\d+):(\d+)\]', tok)
    if m: return [f"{m.group(1)}{i}" for i in range(int(m.group(2)), int(m.group(3))+1)]
    if tok in ('vcc',): return ['vcc']
    if tok in ('vcc_lo','vcc_hi'): return ['vcc']
    if tok in ('exec','exec_lo','exec_hi'): return ['exec']
    if tok == 'm0': return ['m0']
    if tok == 'scc': return ['scc']
    return []

TRANS = ('v_exp_f32','v_log_f32','v_rcp_f32','v_rsq_f32','v_sqrt_f32','v_sin_f32','v_cos_f32')

class I:
    __slots__ = ('text','op','rd','wr','kind','tag','srcc','passes','wait','ab','only')
    def __init__(self, text, tag=None):
        self.text = text.strip()
        self.tag = tag
        self.srcc = []; self.ab = []; self.passes = 0; self.wait = None; self.only = None
        t = self.text.split(';')[0].strip()
        parts = t.split(None, 1)
        op = parts[0]; self.op = op
        rest = parts[1] if len(parts) > 1 else ''
        ops = [o.strip() for o in rest.split(',')] if rest else []
        mods = []
        if ops:
            last = ops[-1].split()
            ops[-1] = last[0]; mods = last[1:]
        R = [_regs(o) for o in ops]
        rd = []; wr = []
        kind = 'other'
        if op.endswith(':'):
            kind = 'label'
        elif op.startswith('v_mfma'):
            kind = 'mfma'; wr = R[0]; rd = R[1]+R[2]+R[3]; self.srcc = R[3]; self.ab = R[1]+R[2]
            self.passes = 8 if '32x32' in op else 4
        elif op.startswith('v_cmp'):
            kind = 'valu'; wr = R[0]; rd = sum(R[1:], [])
            if op.startswith('v_cmpx'): wr = wr + ['exec']
        elif op.startswith('v_permlane') and 'swap' in op:
            kind = 'valu'; wr = R[0]+R[1]; rd = R[0]+R[1]
        elif op.startswith(('v_add_co','v_sub_co','v_addc_co','v_subb_co')):
            kind = 'valu'; wr = R[0]+R[1]; rd = sum(R[2:], [])
        elif op.startswith('v_'):
            kind = 'trans' if op.replace('_e32','').replace('_e64','') in TRANS else 'valu'
            if op == 'v_nop': R = [[]]
            wr = R[0]; rd = sum(R[1:], [])
            if op.startswith(('v_fmac','v_dot2c','v_pk_fmac','v_writelane')): rd = rd + R[0]
            if 'dpp' in op or any(m.startswith(('row_','quad_perm','wave_')) for m in mods): rd = rd + R[0]
        elif op.startswith('ds_read') or op.startswith('ds_bpermute') or op.startswith('ds_swizzle'):
            kind = 'dsr'; wr = R[0]; rd = sum(R[1:], [])
        elif op.startswith('ds_'):
            kind = 'dsw'; rd = sum(R, [])
        elif op.startswith(('buffer_load','global_load')):
            if 'lds' in mods or '_lds_' in op:
                kind = 'dma'; rd = sum(R, []) + ['m0']
            else:
                kind = 'vld'; wr = R[0]; rd = sum(R[1:], [])
        elif op.startswith(('buffer_store','global_store')):
            kind = 'vst'; rd = sum(R, [])
            self.srcc = R[0] if op.startswith('buffer') else R[1]
        elif op.startswith(('s_load','s_buffer_load','s_memtime','s_memrealtime')):
            kind = 'smem'; wr = R[0]; rd = sum(R[1:], [])
        elif op == 's_waitcnt': kind = 'wait'
        elif op == 's_nop': kind = 'nop'
        elif op == 's_barrier': kind = 'barrier'
        elif op.startswith(('s_cbranch','s_branch','s_endpgm')): kind = 'branch'
        elif op.startswith('s_cmp') or op.startswith('s_bitcmp'):
            kind = 'salu'; rd = sum(R, []); wr = ['scc']
        elif op.startswith(('s_setprio','s_sleep')): kind = 'salu'
        elif op.startswith('s_'):
            kind = 'salu'; wr = R[0] if R else []; rd = sum(R[1:], [])
            if 'saveexec' in op: wr = wr + ['exec']; rd = rd + ['exec']
        elif op.startswith('.') : kind = 'directive'
        elif op in ('WAITVM','WAITLGKM'):
            kind = 'pseudo'
        else:
            raise ValueError("unknown instr: " + text)
        self.rd = rd; self.wr = wr; self.kind = kind
    def states(self):
        if self.kind in ('label','directive','pseudo'): return 0
        if self.kind == 'nop': return int(self.text.split()[1]) + 1
        return 1
    def __repr__(self): return self.text

VM = ('vld','vst','dma')
LG = ('dsr','dsw')

class Sim:
    def __init__(self):
        self.vm = []
        self.lg = []
    def copy(self):
        s = Sim(); s.vm = list(self.vm); s.lg = list(self.lg); return s

def _need(queue, pred):
    for idx in range(len(queue)-1, -1, -1):
        if pred(queue[idx]): return len(queue)-1-idx
    return None

def compute_waits(code, st, out, cls=None):
    for idx, ins in enumerate(code):
        nv = nl = None
        if ins.only is not None and ins.only != cls: continue
        if ins.kind == 'pseudo':
            tags = ins.tag if isinstance(ins.tag, (list,tuple,set)) else [ins.tag]
            if ins.op == 'WAITVM':
                nv = _need(st.vm, lambda o: o.tag in tags) if ins.tag != 'ALL' else (0 if st.vm else None)
            else:
                nl = _need(st.lg, lambda o: o.tag in tags) if ins.tag != 'ALL' else (0 if st.lg else None)
        elif ins.kind == 'wait':
            m = re.search(r'vmcnt\((\d+)\)', ins.text)
            if m: n = int(m.group(1)); st.vm = st.vm[max(0,len(st.vm)-n):] if n else []
            m = re.search(r'lgkmcnt\((\d+)\)', ins.text)
            if m: n = int(m.group(1)); st.lg = st.lg[max(0,len(st.lg)-n):] if n else []
            continue
        else:
            touched = set(ins.rd) | set(ins.wr)
            if '_d16' in ins.op: touched = set(ins.rd)
            if touched:
                nv = _need(st.vm, lambda o: o.kind == 'vld' and touched.intersection(o.wr))
                nl = _need(st.lg, lambda o: o.kind in ('dsr','smem') and touched.intersection(o.wr))
                if nl is not None and any(o.kind == 'smem' for o in st.lg): nl = 0
        if nv is not None:
            nv = min(nv, 63); st.vm = st.vm[len(st.vm)-nv:] if nv else []
        if nl is not None:
            nl = min(nl, 15); st.lg = st.lg[len(st.lg)-nl:] if nl else []
        if nv is not None or nl is not None:
            cur = out.setdefault(idx, [None, None])
            if nv is not None: cur[0] = nv if cur[0] is None else min(cur[0], nv)
            if nl is not None: cur[1] = nl if cur[1] is None else min(cur[1], nl)
        if ins.kind in VM: st.vm.append(ins)
        if ins.kind in LG or ins.kind == 'smem': st.lg.append(ins)
    return st

def apply_waits(code, waits):
    out = []
    for idx, ins in enumerate(code):
        if idx in waits:
            nv, nl = waits[idx]
            s = 's_waitcnt'
            if nv is not None: s += f' vmcnt({nv})'
            if nl is not None: s += f' lgkmcnt({nl})'
            out.append(I(s))
        if ins.kind != 'pseudo': out.append(ins)
    return out

def _haz(p, c):
    n = 0
    pw = set(p.wr); cr = set(c.rd); cw = set(c.wr)
    pv = p.kind in ('valu','trans'); cv = c.kind in ('valu','trans')
    cmem = c.kind in ('vld','vst','dma','dsr','dsw')
    if p.kind == 'mfma':
        big = 12 if p.passes == 8 else 8
        ovl = 10 if p.passes == 8 else 6
        if c.kind == 'mfma':
            if pw & set(c.ab): n = max(n, big)
            if pw & set(c.srcc):
                if not (p.wr == c.srcc and p.passes == c.passes): n = max(n, ovl)
            elif pw & cw: n = max(n, ovl)
        elif cv or cmem:
            if pw & (cr | cw): n = max(n, big)
        if cv and set(p.srcc) & cw: n = max(n, 7 if p.passes == 8 else 3)
        if c.kind in ('dsr','vld') and set(p.srcc) & cw: n = max(n, 7 if p.passes == 8 else 3)
    if pv:
        isdot = p.op.startswith('v_dot')
        vw = {r for r in pw if r[0] in 'va' and r != 'vcc'}
        sw = {r for r in pw if r[0] == 's' or r == 'vcc'}
        if c.kind == 'mfma' and vw & cr: n = max(n, 3 if isdot else 2)
        if c.kind == 'mfma' and 'exec' in pw: n = max(n, 4)
        if isdot and (cv or cmem):
            if vw & (cr | cw) and not (c.op == p.op and not (vw & set(c.rd[:-len(c.wr)] if c.op.startswith('v_dot2c') else c.rd[:2]))): n = max(n, 3)
        if p.kind == 'trans' and (cv or cmem) and vw & cr: n = max(n, 1)
        if c.op.startswith('v_permlane') and vw & cr: n = max(n, 2)
        if c.op.startswith(('v_readlane','v_readfirstlane')) and vw & cr: n = max(n, 1)
        if ('dpp' in c.text or 'row_' in c.text or 'quad_perm' in c.text) and cv and vw & cr: n = max(n, 2)
        if cv and sw & cr: n = max(n, 2)
        if cv and c.op.startswith('v_cndmask') and 'vcc' in pw: n = max(n, 2)
        if c.kind in ('vld','vst','dma') and sw & cr: n = max(n, 5)
        if c.kind == 'salu' and sw & cr: n = max(n, 2)
        if c.kind == 'branch' and 'vcc' in pw and 'vcc' in c.op: n = max(n, 5)
        if 'exec' in pw and c.op.startswith(('v_readlane','v_readfirstlane','v_writelane','v_permlane')): n = max(n, 4)
    if p.kind == 'vst' and ('x4' in p.op or 'x3' in p.op):
        if set(p.srcc) & cw: n = max(n, 2)
    if p.kind == 'dsw' and ('b128' in p.op or 'b96' in p.op):
        pass
    if p.kind == 'salu' and 'm0' in pw and c.kind == 'dma': n = max(n, 1)
    return n

def insert_nops(code, history=None):
    out = []
    hist = list(history or [])
    for ins in code:
        if ins.kind not in ('label','directive','pseudo','nop','wait'):
            need = 0; dist = 0
            seq = (hist + out)[-80:]
            skipping = None
            for pi in range(len(seq)-1, -1, -1):
                p = seq[pi]
                if dist >= 20: break
                if p.kind == 'label' and skipping is None:
                    L = p.text[:-1]
                    if any(q.kind == 'branch' and q.text.split()[-1] == L for q in seq[max(0,pi-40):pi]): skipping = L
                if skipping and p.kind == 'branch' and p.text.split()[-1] == skipping: skipping = None
                h = _haz(p, ins) if p.kind in ('mfma','valu','trans','vst','salu') else 0
                if h > dist: need = max(need, h - dist)
                if not skipping: dist += p.states()
            while need > 0:
                k = min(need, 16)
                out.append(I(f's_nop {k-1}')); need -= k
        out.append(ins)
    return out

class Prog:
    def __init__(self):
        self.segs = []; self.cur = []
    def e(self, text, tag=None):
        for line in text.strip().split('\n'):
            line = line.strip()
            if not line or line.startswith(';'): continue
            self.cur.append(I(line, tag))
    def add(self, instrs): self.cur.extend(instrs)
    def waitvm(self, tag):
        i = I('WAITVM'); i.tag = tag; self.cur.append(i)
    def waitlg(self, tag):
        i = I('WAITLGKM'); i.tag = tag; self.cur.append(i)
    def seg(self, kind='lin'):
        if self.cur: self.segs.append((kind, self.cur))
        self.cur = []
    def fork(self):
        self.seg(); self.segs.append(('fork', [])); self.nfork = getattr(self,'nfork',0)+1; return self.nfork-1
    def variant(self, f=0):
        self.seg(); self.segs.append(('variant', f))
    def finish(self, classes=(0,1)):
        self.seg()
        st = {c: Sim() for c in classes}; done = []; hist = []
        forks = []
        for kind, code in self.segs:
            if kind == 'fork':
                forks.append(({c: st[c].copy() for c in classes}, list(hist))); continue
            if kind == 'variant':
                f = forks[code]
                st = {c: f[0][c].copy() for c in classes}; hist = list(f[1]); continue
            waits = {}
            for c in classes:
                if kind == 'lin':
                    st[c] = compute_waits(code, st[c], waits, c)
                else:
                    st1 = compute_waits(code, st[c].copy(), waits, c)
                    st2 = compute_waits(code, st1.copy(), waits, c)
                    compute_waits(code, st2.copy(), waits, c)
                    st[c] = st2
            c = apply_waits(code, waits)
            c = insert_nops(c, hist)
            if kind == 'loop': c = insert_nops(c, c[-40:-1])
            done.extend(c); hist = (hist + c)[-40:]
        return done
    def text(self):
        out = []
        for i in self.finish():
            out.append(i.text if i.kind == 'label' else '    ' + i.text)
        return '\n'.join(out) + '\n'

def mk(text, tag=None):
    return [I(l.strip(), tag) for l in text.strip().split('\n') if l.strip() and not l.strip().startswith(';')]

def wv(tag):
    i = I('WAITVM'); i.tag = tag; return i
def wl(tag):
    i = I('WAITLGKM'); i.tag = tag; return i

def vr(b, n=1): return f"v{b}" if n == 1 else f"v[{b}:{b+n-1}]"
def sr(b, n=1): return f"s{b}" if n == 1 else f"s[{b}:{b+n-1}]"

class Alloc:
    def __init__(self, start=0, limit=256): self.n = start; self.limit = limit; self.names = {}
    def __call__(self, name, cnt=1, align=1):
        if cnt >= 2: align = max(align, 2)
        self.n = (self.n + align - 1)//align*align
        b = self.n; self.n += cnt
        assert self.n <= self.limit, f"out of regs allocating {name}: {self.n}"
        self.names[name] = (b, cnt)
        return b

def spread(slots, fillers):
    n = len(slots); m = len(fillers)
    for j, f in enumerate(fillers):
        k = min(n-1, j*n//m)
        if isinstance(f, list): slots[k].extend(f)
        else: slots[k].append(f)

_lbl = [0]
def only(cls, instrs, prefix="L"):
    _lbl[0] += 1; L = f"{prefix}_O{_lbl[0]}"
    out = mk(f"s_cbranch_vccnz {L}" if cls == 0 else f"s_cbranch_vccz {L}")
    for i in instrs:
        j = I(i.text, i.tag); j.only = cls; out.append(j)
    out += mk(f"{L}:")
    return out
def flat(L): return [x for g in L for x in (flat(g) if isinstance(g, list) else [g])]
```

```python
from asmlib import *
S=2048; D=576; F=4608; H=32; DH=18
QK_OFF  = 0
VF_OFF  = 288*16384
HF_OFF  = 8<<20
WDF_OFF = 28<<20
OF_OFF  = 36<<20
WOF_OFF = 39<<20
PART_OFF= 40<<20
WS_BYTES= 64<<20
import struct, math
def f2u(x): return struct.unpack('<I', struct.pack('<f', x))[0]
def fx(x): return f"0x{f2u(x):08x}"
LOG2E = 1.4426950408889634

def srd(p, d, lo, hi, nbytes):
    p.e(f"s_mov_b32 s{d}, s{lo}\ns_mov_b32 s{d+1}, s{hi}\ns_mov_b32 s{d+2}, {nbytes}\ns_mov_b32 s{d+3}, 0x20000")

def kernel_text(name, prog):
    return f".globl {name}\n.p2align 8\n.type {name},@function\n{name}:\n" + prog.text()

def kd(name, vgpr, sgpr=96, acc=None):
    if acc is None: acc = min(256,(vgpr+3)//4*4)
    return f""".amdhsa_kernel {name}
  .amdhsa_next_free_vgpr {vgpr}
  .amdhsa_next_free_sgpr {sgpr}
  .amdhsa_accum_offset {acc}
  .amdhsa_group_segment_fixed_size 0
  .amdhsa_kernarg_size 80
  .amdhsa_user_sgpr_count 2
  .amdhsa_user_sgpr_kernarg_segment_ptr 1
  .amdhsa_system_sgpr_workgroup_id_x 1
.end_amdhsa_kernel
"""
```

```python
from common import *

K1_LDS = 147456
BUFB = 24576
def bufmap(k): return k if k < 2 else [2,3,0,1,4,5][(k-2)%6]
NB, LA = 6, 5
STAMP = False
MAPMODE = 0

def gen_k1():
    p = Prog()
    def stamp(n):
        if STAMP: p.e(f"s_memtime s[{64+2*n}:{65+2*n}]")
    def stamps_out(nst):
        if not STAMP: return
        p.e("s_memrealtime s[82:83]\ns_waitcnt lgkmcnt(0)\ns_sub_u32 s82, s82, s80\ns_add_u32 s78, s82, s64")
        p.e(f"s_lshl_b32 s62, s2, 3\ns_add_u32 s62, s62, s{sW}\ns_lshl_b32 s62, s62, 6\ns_add_u32 s62, s62, {60<<20}\nv_mov_b32 v1, 0")
        for n in range(nst):
            p.e(f"v_mov_b32 v2, s{64+2*n}\nbuffer_store_dword v2, v1, s[{sWS}:{sWS+3}], s62 offen offset:{4*n}")
    va = Alloc(1)
    X = va('X', 144, 4)
    G = va('G',16,4); U = va('U',16,4); E = va('E',16,4)
    WF = va('wf', 4*NB, 4)
    T = va('t', 8, 4)
    OUT = va('out', 8, 4)
    RA = va('ra'); vDT = va('dT')
    vVG = va('vg'); vVU = va('vu'); vROW = va('row'); vCH = va('ch')
    vST = va('st'); vQST = va('qst'); vCB = va('cb')
    vMASK = va('mask')
    RAW = X + 72
    XA = [G+q for q in range(4)]; vXW = [G+4, G+5]; vXV = G+6
    vS = [G+8+i for i in range(4)]
    vONE = G+12
    global K1_VGPRS; K1_VGPRS = va.n
    sX=8; sSG=12; sSU=16; sWS=20; sWH=24
    sW=28; sG=29; sRG=30; sMB=31; sCG=32; sLDSW=33
    sOG=34; sOU=35; sSTG=36; sSTU=37; sSTG2=38; sSTU2=39; sCOL=40
    sT0=41; sT1=42; sHOFF=43; sQOFF=44; sQSC=45; sLOOP=46; sMT=47
    kx,kq,kg,ku,kd_,kw = 48,50,52,54,56,58
    sB1n=60; sB1o=61; sB2lo=86; sB2hi=87; sB2n=88; sB2o=89; sB2st=90; sBMODE=91; sBOFF=92; sUU=93
    if MAPMODE == 0:
        mapping = f"""s_and_b32 s{sT0}, s2, 3
    s_lshl_b32 s{sMB}, s{sT0}, 2
    s_bfe_u32 s{sT0}, s2, 0x20003
    s_add_u32 s{sMB}, s{sMB}, s{sT0}
    s_bfe_u32 s{sT0}, s2, 0x10002
    s_lshl_b32 s{sCG}, s{sT0}, 3
    s_lshr_b32 s{sT0}, s2, 5
    s_add_u32 s{sCG}, s{sCG}, s{sT0}"""
    elif MAPMODE == 1:
        mapping = f"""s_and_b32 s{sT0}, s2, 1
    s_lshl_b32 s{sMB}, s{sT0}, 3
    s_bfe_u32 s{sT0}, s2, 0x30003
    s_add_u32 s{sMB}, s{sMB}, s{sT0}
    s_bfe_u32 s{sT0}, s2, 0x20001
    s_lshl_b32 s{sCG}, s{sT0}, 2
    s_lshr_b32 s{sT0}, s2, 6
    s_add_u32 s{sCG}, s{sCG}, s{sT0}"""
    elif MAPMODE == 2:
        mapping = f"""s_bfe_u32 s{sMB}, s2, 0x40003
    s_and_b32 s{sT0}, s2, 7
    s_lshl_b32 s{sCG}, s{sT0}, 1
    s_lshr_b32 s{sT0}, s2, 7
    s_add_u32 s{sCG}, s{sCG}, s{sT0}"""
    else:
        mapping = f"""s_and_b32 s{sT0}, s2, 7
    s_lshl_b32 s{sMB}, s{sT0}, 1
    s_bfe_u32 s{sT0}, s2, 0x10003
    s_add_u32 s{sMB}, s{sMB}, s{sT0}
    s_lshr_b32 s{sCG}, s2, 4"""
    p.e(f"""
    s_cmp_ge_u32 s2, 256
    s_cbranch_scc1 K1_END
    {'s_memtime s[64:65]' if STAMP else ''}
    {'s_memrealtime s[80:81]' if STAMP else ''}
    s_load_dwordx4 s[48:51], s[0:1], 0
    s_load_dwordx4 s[52:55], s[0:1], 32
    s_load_dwordx2 s[56:57], s[0:1], 48
    s_load_dwordx2 s[58:59], s[0:1], 72
    v_lshrrev_b32 v{T}, 6, v0
    v_and_b32 v0, 63, v0
    v_readfirstlane_b32 s{sW}, v{T}
    s_lshr_b32 s{sG}, s{sW}, 2
    s_and_b32 s{sRG}, s{sW}, 3
    {mapping}
    ; x load voffset: (l/8)*1152 + (l%8)*16
    v_lshrrev_b32 v{T}, 3, v0
    v_mul_u32_u24 v{vXV}, 1152, v{T}
    v_and_b32 v{T+1}, 7, v0
    v_lshl_add_u32 v{vXV}, v{T+1}, 4, v{vXV}
    s_lshl_b32 s{sT0}, s{sMB}, 3
    s_add_u32 s{sT0}, s{sT0}, s{sW}
    s_mul_i32 s{sT0}, s{sT0}, {16*1152}
    s_add_u32 s{sT1}, s{sT0}, {8*1152}
    s_waitcnt lgkmcnt(0)
    """)
    srd(p, sX, kx, kx+1, S*D*2)
    for j in range(9):
        for b in range(2):
            p.e(f"buffer_load_dwordx4 {vr(RAW+8*j+4*b,4)}, v{vXV}, s[{sX}:{sX+3}], s{sT0 if b==0 else sT1} offen offset:{128*j}")
    p.e(f"""
    s_mul_i32 s{sT0}, s{sW}, 24
    v_add_u32 v{vROW}, s{sT0}, v{T}
    v_bfe_u32 v{T+2}, v0, 4, 1
    v_lshlrev_b32 v{T+2}, 2, v{T+2}
    v_xor_b32 v{T+2}, v{T+2}, v{T+1}
    v_lshlrev_b32 v{vCH}, 4, v{T+2}
    v_mul_u32_u24 v{vVU}, 3456, v{vROW}
    v_add_u32 v{vVU}, v{vVU}, v{vCH}
    v_mul_u32_u24 v{vVG}, 9216, v{vROW}
    v_add_u32 v{vVG}, v{vVG}, v{vCH}
    s_mul_i32 s{sLDSW}, s{sW}, 3072
    s_lshl_b32 s{sOU}, s{sCG}, 7
    s_mov_b32 s{sSTU}, {8*3456}
    s_mov_b32 s{sSTU2}, {(192-16)*3456}
    s_mov_b32 s{sSTG}, {8*9216}
    s_mov_b32 s{sSTG2}, {(192-16)*9216}
    s_mul_i32 s{sCOL}, s{sCG}, 5
    s_lshl_b32 s{sT0}, s{sCG}, 2
    s_add_u32 s{sT0}, s{sT0}, 8
    s_cmp_lt_u32 s{sCG}, 8
    s_cselect_b32 s{sCOL}, s{sCOL}, s{sT0}
    s_cselect_b32 s{sLOOP}, 5, 4
    s_lshl_b32 s{sHOFF}, s{sCOL}, 12
    s_lshl_b32 s{sCOL}, s{sCOL}, 7
    s_mov_b32 s{sOG}, s{sCOL}
    """)
    srd(p, sSU, kq, kq+1, D*3*D*2)
    srd(p, sSG, kg, kg+1, D*F*2)

    def dma_w(k):
        out = []; b = bufmap(k); isU = (k//3) % 2 == 0
        sS, sO, st, st2, vV = (sSU,sOU,sSTU,sSTU2,vVU) if isU else (sSG,sOG,sSTG,sSTG2,vVG)
        for i in range(3):
            out.append(mk(f"""s_add_u32 m0, s{sLDSW}, {b*BUFB + i*1024}
            s_nop 0
            buffer_load_dwordx4 v{vV}, s[{sS}:{sS+3}], s{sO} offen lds
            s_add_u32 s{sO}, s{sO}, s{st if i<2 else st2}""", tag=f"w{b}"))
        return out
    for k in range(4): p.add(flat(dma_w(k)))
    p.e(f"""s_mov_b32 s{sSU}, s{ku}
    s_mov_b32 s{sSU+1}, s{ku+1}
    s_mov_b32 s{sSU+2}, {D*F*2}
    s_mov_b32 s{sOU}, s{sCOL}
    s_mov_b32 s{sSTU}, s{sSTG}
    s_mov_b32 s{sSTU2}, s{sSTG2}
    v_mov_b32 v{vVU}, v{vVG}""")
    srd(p, sWS, kw, kw+1, WS_BYTES)
    srd(p, sWH, kw, kw+1, 0)
    XB = 4*BUFB
    p.e(f"""
    s_sub_u32 s{sUU}, s{sCG}, 8
    s_mov_b32 s{sB1n}, 0
    s_mov_b32 s{sB2n}, 0
    s_mov_b32 s{sB1o}, 0
    s_mov_b32 s{sB2o}, 0
    s_mov_b32 s{sB2lo}, s{kq}
    s_mov_b32 s{sB2hi}, s{kq+1}
    s_mov_b32 s{sB2st}, 3456
    s_mov_b32 s{sBMODE}, 0
    s_mov_b32 s{sBOFF}, 0
    s_cmp_lt_u32 s{sCG}, 8
    s_cbranch_scc1 K1_BD
    s_mov_b32 s{sB1n}, {D*3*D*2}
    s_add_u32 s{sB1o}, s{sUU}, 16
    s_lshl_b32 s{sB1o}, s{sB1o}, 7
    s_mov_b32 s{sB2n}, {D*3*D*2}
    s_add_u32 s{sB2o}, s{sB1o}, {8*128}
    s_mov_b32 s{sBMODE}, 1                 ; B2 = V round
    s_cmp_lt_u32 s{sUU}, 3
    s_cbranch_scc1 K1_BD
    s_mul_i32 s{sT0}, s{sMB}, 5
    s_add_u32 s{sT0}, s{sT0}, s{sUU}
    s_sub_u32 s{sT0}, s{sT0}, 3            ; tidx
    s_mov_b32 s{sBMODE}, 2
    s_mov_b32 s{sB2lo}, s{kd_}
    s_mov_b32 s{sB2hi}, s{kd_+1}
    s_mov_b32 s{sB2n}, {F*D*2}
    s_mov_b32 s{sB2st}, 1152
    s_cmp_ge_u32 s{sT0}, 72
    s_cselect_b32 s{sBMODE}, 3, s{sBMODE}
    s_cselect_b32 s{sB2n}, 0, s{sB2n}
    s_mul_i32 s{sT1}, s{sT0}, 57
    s_lshr_b32 s{sT1}, s{sT1}, 9
    s_mul_i32 s{sB2o}, s{sT1}, 9
    s_sub_u32 s{sT0}, s{sT0}, s{sB2o}     ; cp
    s_mul_i32 s{sB2o}, s{sT1}, {576*1152}
    s_mul_i32 s{sBOFF}, s{sT1}, {36*18*1024}
    s_lshl_b32 s{sT1}, s{sT0}, 7
    s_add_u32 s{sB2o}, s{sB2o}, s{sT1}
    s_lshl_b32 s{sT1}, s{sT0}, 11
    s_add_u32 s{sBOFF}, s{sBOFF}, s{sT1}
K1_BD:
    ; ---- W read address: krow = 8h + (l%16)/4 ; byte = krow*128 + ((g ^ ((krow/2)%2))*64) + gi*32 + c*8
    v_lshrrev_b32 v{T}, 5, v0              ; h
    v_bfe_u32 v{T+1}, v0, 2, 2             ; r4
    v_bfe_u32 v{T+2}, v0, 3, 1             ; (krow/2)%2
    v_xor_b32 v{T+2}, s{sG}, v{T+2}
    v_lshlrev_b32 v{T+2}, 6, v{T+2}
    v_lshl_add_u32 v{T+2}, v{T+1}, 7, v{T+2}    ; r4*128 + half*64
    v_bfe_u32 v{T+3}, v0, 4, 1             ; gi
    v_and_b32 v{T+4}, 3, v0                ; c
    v_lshl_add_u32 v{RA}, v{T}, 10, v{T+2}
    v_lshl_add_u32 v{RA}, v{T+3}, 5, v{RA}
    v_lshl_add_u32 v{RA}, v{T+4}, 3, v{RA}
    ; T mode addr: (4h + r4)*128 + half*64 + 32*(c%2) + 16gi + 8*(c/2) + rg*2048
    v_lshl_add_u32 v{vDT}, v{T}, 9, v{T+2}
    v_lshl_add_u32 v{vDT}, v{T+3}, 4, v{vDT}
    v_and_b32 v{T+5}, 1, v0
    v_lshl_add_u32 v{vDT}, v{T+5}, 5, v{vDT}
    v_bfe_u32 v{T+5}, v0, 1, 1
    v_lshl_add_u32 v{vDT}, v{T+5}, 3, v{vDT}
    s_lshl_b32 s{sT0}, s{sRG}, 11
    v_add_u32 v{vDT}, s{sT0}, v{vDT}
    ; x staging read addrs: XB + (32rg + row32)*128 + (((2kk+h) ^ ((row32%16)/2))*16)
    v_and_b32 v{T+1}, 31, v0
    s_lshl_b32 s{sT0}, s{sRG}, 12
    s_add_u32 s{sT0}, s{sT0}, {XB}
    v_lshlrev_b32 v{T+2}, 7, v{T+1}
    v_add_u32 v{T+2}, s{sT0}, v{T+2}
    v_bfe_u32 v{T+3}, v0, 1, 3
    v_xor_b32 v{T+3}, v{T+3}, v{T}
    v_lshl_add_u32 v{XA[0]}, v{T+3}, 4, v{T+2}
    v_xor_b32 v{XA[1]}, 32, v{XA[0]}
    v_xor_b32 v{XA[2]}, 64, v{XA[0]}
    v_xor_b32 v{XA[3]}, 96, v{XA[0]}
    ; x staging write addrs: XB + (16w + 8b + l/8)*128 + (((l%8) ^ (4b + l/16))*16)
    v_lshrrev_b32 v{T+2}, 3, v0
    s_lshl_b32 s{sT0}, s{sW}, 11
    s_add_u32 s{sT0}, s{sT0}, {XB}
    v_lshlrev_b32 v{T+2}, 7, v{T+2}
    v_add_u32 v{T+2}, s{sT0}, v{T+2}
    v_lshrrev_b32 v{T+3}, 4, v0
    v_xor_b32 v{T+3}, v{T+3}, v0
    v_and_b32 v{T+3}, 7, v{T+3}
    v_lshl_add_u32 v{vXW[0]}, v{T+3}, 4, v{T+2}
    v_xor_b32 v{vXW[1]}, 64, v{vXW[0]}
    v_add_u32 v{vXW[1]}, 1024, v{vXW[1]}
    v_lshlrev_b32 v{vST}, 4, v0
    v_lshlrev_b32 v{vQST}, 14, v{T}
    v_lshl_add_u32 v{vQST}, v{T+1}, 3, v{vQST}
    v_mov_b32 v{vONE}, 0x3f803f80
    v_mov_b32 v{vMASK}, 0xffff0000
    v_mov_b32 v{vCB}, {fx(-2*0.7978845608028654*LOG2E*0.044715)}
    v_mov_b32 v{vS[0]}, 0
    v_mov_b32 v{vS[1]}, 0
    v_mov_b32 v{vS[2]}, 0
    v_mov_b32 v{vS[3]}, 0
    s_lshl_b32 s{sMT}, s{sMB}, 2
    s_add_u32 s{sMT}, s{sMT}, s{sRG}
    s_mul_i32 s{sT0}, s{sMT}, {288*1024}
    s_add_u32 s{sHOFF}, s{sHOFF}, s{sT0}
    s_lshl_b32 s{sT0}, s{sG}, 11
    s_add_u32 s{sHOFF}, s{sHOFF}, s{sT0}
    s_add_u32 s{sHOFF}, s{sHOFF}, {HF_OFF - 4096}
    s_lshl_b32 s{sQOFF}, s{sCG}, 18
    s_lshl_b32 s{sT1}, s{sG}, 17
    s_add_u32 s{sQOFF}, s{sQOFF}, s{sT1}
    s_lshl_b32 s{sT1}, s{sMT}, 8
    s_add_u32 s{sQOFF}, s{sQOFF}, s{sT1}
    s_mov_b32 s{sQSC}, 1.0
    s_cmp_lt_u32 s{sCG}, 9
    s_cselect_b32 s{sQSC}, {fx(DH**-0.5*LOG2E)}, s{sQSC}
    s_cmp_lg_u32 s{sG}, 0
    s_cselect_b64 vcc, -1, 0
    """)
    stamp(1)
    for j in range(9):
        for b in range(2):
            for d in range(4):
                x = RAW+8*j+4*b+d
                p.e(f"v_dot2c_f32_bf16 v{vS[2*b]}, v{x}, v{vONE}\nv_dot2c_f32_bf16 v{vS[2*b+1]}, v{x}, v{x}")
    stamp(2)
    for ctl in ("quad_perm:[1,0,3,2]", "quad_perm:[2,3,0,1]", "row_half_mirror"):
        for i in range(4): p.e(f"v_add_f32_dpp v{vS[i]}, v{vS[i]}, v{vS[i]} {ctl} row_mask:0xf bank_mask:0xf")
    def fin(b):
        s1, s2, t = vS[2*b], vS[2*b+1], T+b
        return f"""v_mul_f32 v{s1}, {fx(1.0/D)}, v{s1}
        v_mul_f32 v{s2}, {fx(1.0/D)}, v{s2}
        v_fma_f32 v{s2}, -v{s1}, v{s1}, v{s2}
        v_max_f32 v{s2}, 0, v{s2}
        v_cvt_pk_bf16_f32 v{t}, v{s1}, v{s2}
        v_lshlrev_b32 v{s2}, 16, v{t}
        v_and_b32 v{t}, v{vMASK}, v{t}
        v_add_f32 v{t}, {fx(1e-5)}, v{t}
        v_cvt_pk_bf16_f32 v{t}, v{t}, v{t}
        v_and_b32 v{t}, v{vMASK}, v{t}
        v_sqrt_f32 v{t}, v{t}
        v_cvt_pk_bf16_f32 v{t}, v{t}, v{t}
        v_and_b32 v{t}, v{vMASK}, v{t}
        v_rcp_f32 v{s1}, v{t}
        v_mul_f32_e64 v{s2}, -v{s2}, v{s1}""".split('\n')
    for a, b in zip(fin(0), fin(1)): p.e(a); p.e(b)

    def norm(j):
        o = []
        for b in range(2):
            for d in range(4):
                x = RAW+8*j+4*b+d; t = E + 2*(d%2) + 4*b
                o.append(mk(f"v_lshlrev_b32 v{t}, 16, v{x}\nv_and_b32 v{t+1}, v{vMASK}, v{x}"))
                o.append(mk(f"v_fma_f32 v{t}, v{t}, v{vS[2*b]}, v{vS[2*b+1]}\nv_fma_f32 v{t+1}, v{t+1}, v{vS[2*b]}, v{vS[2*b+1]}"))
                o.append(mk(f"v_cvt_pk_bf16_f32 v{OUT+4*b+d}, v{t}, v{t+1}"))
            o.append(mk(f"ds_write_b128 v{vXW[b]}, {vr(OUT+4*b,4)} offset:{(j%3)*16384}", tag="xw"))
        return o
    def xread(j):
        return flat([mk(f"ds_read_b128 {vr(X+16*j+4*kk,4)}, v{XA[kk]} offset:{(j%3)*16384}") for kk in range(4)])
    def wread(gi):
        k = gi//12; il = gi%12; out = []
        if il == 0 and k > 0:
            pb = bufmap(k-1)//2; nb = bufmap(k)//2
            if pb != nb: out += mk(f"v_add_u32 v{RA}, {((nb-pb)*2*BUFB) & 0xffffffff}, v{RA}")
        off = (bufmap(k)%2)*BUFB + il*2048
        d = WF + 4*(gi % NB)
        out += mk(f"ds_read_b64_tr_b16 v[{d}:{d+1}], v{RA} offset:{off}\nds_read_b64_tr_b16 v[{d+2}:{d+3}], v{RA} offset:{off+512}")
        return out
    def mfma(r, i, swap=False):
        a = U if r % 2 == 0 else G
        d = WF + 4*((r*36+i) % NB); x = X + 4*i
        c = "0" if i == 0 else vr(a,16)
        A, B = (vr(d,4), vr(x,4)) if not swap else (vr(x,4), vr(d,4))
        return mk(f"v_mfma_f32_32x32x16_bf16 {vr(a,16)}, {A}, {B}, {c}")
    cnt = [0]
    def switch_g():
        cnt[0] += 1; n = cnt[0]
        return mk(f"""s_add_u32 s{sCOL}, s{sCOL}, 128
        s_mov_b32 s{sOG}, s{sCOL}
        s_cmp_gt_u32 s{sLOOP}, 1
        s_cbranch_scc1 K1_SW{n}
        s_mov_b32 s{sSG}, s{kq}
        s_mov_b32 s{sSG+1}, s{kq+1}
        s_mov_b32 s{sSG+2}, s{sB1n}
        s_mov_b32 s{sOG}, s{sB1o}
        s_mov_b32 s{sSTG}, {8*3456}
        s_mov_b32 s{sSTG2}, {(192-16)*3456}
        v_mul_u32_u24 v{vVG}, 3456, v{vROW}
        v_add_u32 v{vVG}, v{vVG}, v{vCH}
        K1_SW{n}:""")
    def switch_u():
        cnt[0] += 1; n = cnt[0]
        return mk(f"""s_mov_b32 s{sOU}, s{sCOL}
        s_cmp_gt_u32 s{sLOOP}, 1
        s_cbranch_scc1 K1_SW{n}
        s_mov_b32 s{sSU}, s{sB2lo}
        s_mov_b32 s{sSU+1}, s{sB2hi}
        s_mov_b32 s{sSU+2}, s{sB2n}
        s_mov_b32 s{sOU}, s{sB2o}
        s_lshl_b32 s{sSTU}, s{sB2st}, 3
        s_mul_i32 s{sSTU2}, s{sB2st}, {192-16}
        v_mul_u32_u24 v{vVU}, s{sB2st}, v{vROW}
        v_add_u32 v{vVU}, v{vVU}, v{vCH}
        K1_SW{n}:""")
    def gelu():
        o = []
        for q in range(4):
            es = range(4*q, 4*q+4)
            for e in es: o.append(mk(f"v_mul_f32 v{E+e}, v{G+e}, v{G+e}"))
            for e in es: o.append(mk(f"v_fmaak_f32 v{E+e}, v{E+e}, v{vCB}, {fx(-2*0.7978845608028654*LOG2E)}"))
            for e in es: o.append(mk(f"v_mul_f32 v{E+e}, v{G+e}, v{E+e}"))
            for e in es: o.append(mk(f"v_exp_f32 v{E+e}, v{E+e}"))
            for e in es: o.append(mk(f"v_add_f32 v{E+e}, 1.0, v{E+e}"))
            for e in es: o.append(mk(f"v_rcp_f32 v{E+e}, v{E+e}"))
            for e in es: o.append(mk(f"v_mul_f32 v{E+e}, v{G+e}, v{E+e}"))
        return o
    def prod():
        o = []
        for hf in range(2):
            for e in range(8*hf, 8*hf+8): o.append(mk(f"v_mul_f32 v{E+e}, v{E+e}, v{U+e}"))
            for e in range(4): o.append(mk(f"v_cvt_pk_bf16_f32 v{OUT+4*hf+e}, v{E+8*hf+2*e}, v{E+8*hf+2*e+1}"))
            o.append(mk(f"buffer_store_dwordx4 {vr(OUT+4*hf,4)}, v{vST}, s[{sWH}:{sWH+3}], s{sHOFF} offen offset:{1024*hf}"))
        o.append(mk(f"s_add_u32 s{sHOFF}, s{sHOFF}, 4096\ns_mov_b32 s{sWH+2}, {WS_BYTES}"))
        return o
    def epi_qk(a, scale):
        o = []
        for rq in range(4):
            if scale:
                for e in range(4): o += mk(f"v_mul_f32 v{a+4*rq+e}, s{sQSC}, v{a+4*rq+e}")
            d = OUT + 2*rq
            o += mk(f"v_cvt_pk_bf16_f32 v{d}, v{a+4*rq}, v{a+4*rq+1}\nv_cvt_pk_bf16_f32 v{d+1}, v{a+4*rq+2}, v{a+4*rq+3}")
            o += mk(f"s_add_u32 s{sT1}, s{sQOFF}, {rq*2*16384}\nbuffer_store_dwordx2 {vr(d,2)}, v{vQST}, s[{sWS}:{sWS+3}], s{sT1} offen")
        return o
    def epi_v(a, joff):
        o = mk(f"""s_add_u32 s{sT0}, s{sUU}, {joff-18}
        s_lshl_b32 s{sT0}, s{sT0}, 6
        s_lshl_b32 s{sT1}, s{sG}, 5
        s_add_u32 s{sT0}, s{sT0}, s{sT1}
        v_and_b32 v{T+4}, 31, v0
        v_add_u32 v{T+4}, s{sT0}, v{T+4}
        v_mul_u32_u24 v{T+5}, 3641, v{T+4}
        v_lshrrev_b32 v{T+5}, 16, v{T+5}
        v_mul_u32_u24 v{T+6}, 18, v{T+5}
        v_sub_u32 v{T+4}, v{T+4}, v{T+6}
        v_mul_u32_u24 v{T+5}, 73728, v{T+5}
        v_lshl_add_u32 v{T+5}, v{T+4}, 4, v{T+5}
        v_lshrrev_b32 v{T+6}, 5, v0
        v_mul_u32_u24 v{T+6}, 288, v{T+6}
        v_add_u32 v{T+5}, v{T+5}, v{T+6}
        s_mul_i32 s{sT0}, s{sMT}, 1152
        s_add_u32 s{sT0}, s{sT0}, {VF_OFF}""")
        for e in range(8): o += mk(f"v_cvt_pk_bf16_f32 v{OUT+e}, v{a+2*e}, v{a+2*e+1}")
        o += mk(f"buffer_store_dwordx4 {vr(OUT,4)}, v{T+5}, s[{sWS}:{sWS+3}], s{sT0} offen")
        o += mk(f"buffer_store_dwordx4 {vr(OUT+4,4)}, v{T+5}, s[{sWS}:{sWS+3}], s{sT0} offen offset:576")
        return o

    def round_body(r, fillers, swap=False, f0=2, f1=34):
        slots = []; tails = []
        for i in range(36):
            k = r*3 + i//12; il = i % 12
            s = mfma(r, i, swap); t = []
            if il == 0 and k+1 <= 32:
                s.append(wv(f"w{bufmap(k+1)}")); s += mk("s_barrier")
            gi = r*36 + i + LA
            if gi < 396: s += wread(gi)
            if k+5 <= 32:
                if il == 0 and r <= 2:
                    if (k+5) % 6 == 3: t += switch_g()
                    if (k+5) % 6 == 0: t += switch_u()
                if il in (1,5,9): t += dma_w(k+5)[il//4]
            slots.append(s); tails.append(t)
        spread(slots[f0:f1], fillers)
        return flat([a+b for a,b in zip(slots,tails)])

    p.add(flat(norm(0)))
    for j in range(10):
        if j < 9: p.add([wl("xw")])
        if j == 0: p.add([wv("w0")])
        if j == 2: p.add([wv("w1")])
        if j == 5: p.add([wv("w2")])
        if j == 8: p.add([wv("w3")])
        if j < 9: p.e("s_barrier"); p.add(xread(j))
        if j == 0:
            for gi in range(LA): p.add(wread(gi))
            p.add(flat(norm(1))); continue
        slots = []
        for kk in range(4):
            i = 4*(j-1) + kk
            slots.append(mfma(0, i) + wread(i+LA))
        fl = norm(j+1) if j+1 < 9 else []
        if j in (4, 7):
            dm = dma_w(4 if j == 4 else 5)
            for q in range(3): slots[q] += dm[q]
        if fl: spread(slots, fl)
        p.add(flat(slots))
    stamp(3)
    p.e("s_barrier")
    p.add(flat(dma_w(6))); p.add(flat(dma_w(7)))
    p.add(epi_qk(U, True))
    stamp(4)
    p.seg()
    p.e("K1_LOOP:")
    p.add(round_body(1, prod(), f0=3, f1=24))
    p.add(round_body(2, gelu(), f0=3))
    p.e(f"s_sub_u32 s{sLOOP}, s{sLOOP}, 1\ns_cmp_lg_u32 s{sLOOP}, 0\ns_cbranch_scc1 K1_LOOP")
    p.seg('loop')
    stamp(5)
    p.e(f"""s_cmp_ge_u32 s{sCG}, 10
    s_cbranch_scc1 K1_B1V
    s_cmp_ge_u32 s{sCG}, 8
    s_cbranch_scc1 K1_B1K""")
    f0 = p.fork()
    p.add(flat(prod()))
    stamp(6); stamps_out(8)
    p.e("s_endpgm")
    p.variant(f0)
    p.e("K1_B1K:")
    p.add(round_body(9, prod(), f0=3, f1=24))
    p.e(f"s_add_u32 s{sQOFF}, s{sQOFF}, {8<<18}")
    p.add(epi_qk(G, False))
    p.e("s_waitcnt vmcnt(0)\ns_branch K1_B2V")
    p.variant(f0)
    p.e("K1_B1V:")
    p.add(round_body(9, prod(), swap=True, f0=3, f1=24))
    p.add(epi_v(G, 16))
    p.e(f"""s_cmp_ge_u32 s{sBMODE}, 2
    s_cbranch_scc1 K1_BT""")
    f1 = p.fork()
    p.e("K1_B2V:")
    p.add(round_body(10, [], swap=True))
    p.add(epi_v(U, 24))
    stamp(6); stamps_out(8)
    p.e("s_endpgm")
    p.variant(f1)
    p.e("K1_BT:")
    p.e(f"""s_cmp_eq_u32 s{sBMODE}, 3
    s_cbranch_scc1 K1_END""")
    p.add([wv([f"w{bufmap(k)}" for k in (30,31,32)])]); p.e("s_barrier")
    p.e(f"""s_lshl_b32 s{sT0}, s{sG}, 10
    s_add_u32 s{sBOFF}, s{sBOFF}, s{sT0}
    s_mul_i32 s{sT0}, s{sRG}, 18432
    s_add_u32 s{sBOFF}, s{sBOFF}, s{sT0}
    s_add_u32 s{sBOFF}, s{sBOFF}, {WDF_OFF}""")
    for n in range(9):
        k = 30 + n//3
        if n % 3 == 0: p.e(f"v_add_u32 v{RA}, {bufmap(k)*BUFB}, v{vDT}")
        off = (n%3)*8192
        d = X + 4*n
        p.e(f"ds_read_b64_tr_b16 v[{d}:{d+1}], v{RA} offset:{off}\nds_read_b64_tr_b16 v[{d+2}:{d+3}], v{RA} offset:{off+1024}")
    for n in range(9):
        d = X + 4*n
        p.e(f"buffer_store_dwordx4 {vr(d,4)}, v{vST}, s[{sWS}:{sWS+3}], s{sBOFF} offen\ns_add_u32 s{sBOFF}, s{sBOFF}, {4*18432}")
    stamp(6); stamps_out(8)
    p.e("K1_END:\ns_endpgm")
    return p
```

```python
from common import *
K2_LDS = 163840
VB = 81920
ONES = VB + 73728
STAMP = False
DO_ATT = True; DO_GEMM = True
UNR = 4

def gen_k2():
    p = Prog()
    sWS=8; sW=12; sXCD=13; sIDX=14; sT0=15; sT1=16; sT2=17; kw=18
    def stamp(n):
        if STAMP: p.e(f"s_memtime s[{64+2*n}:{65+2*n}]")
    def stamps_out(nst):
        if not STAMP: return
        p.e("s_memrealtime s[82:83]\ns_waitcnt lgkmcnt(0)\ns_sub_u32 s82, s82, s80\ns_add_u32 s78, s82, s64")
        p.e(f"s_lshl_b32 s62, s2, 4\ns_add_u32 s62, s62, s{sW}\ns_lshl_b32 s62, s62, 6\ns_add_u32 s62, s62, {61<<20}\nv_mov_b32 v1, 0")
        for n in range(nst):
            p.e(f"v_mov_b32 v2, s{64+2*n}\nbuffer_store_dword v2, v1, s[{sWS}:{sWS+3}], s62 offen offset:{4*n}")
    p.e(f"""
    s_cmp_ge_u32 s2, 256
    s_cbranch_scc1 K2_END
    {'s_memtime s[64:65]' if STAMP else ''}
    {'s_memrealtime s[80:81]' if STAMP else ''}
    s_load_dwordx2 s[{kw}:{kw+1}], s[0:1], 72
    v_lshrrev_b32 v1, 6, v0
    v_and_b32 v0, 63, v0
    v_readfirstlane_b32 s{sW}, v1
    s_and_b32 s{sXCD}, s2, 7
    s_lshr_b32 s{sIDX}, s2, 3
    s_waitcnt lgkmcnt(0)
    """)
    srd(p, sWS, kw, kw+1, WS_BYTES)
    p.e(f"s_cmp_ge_u32 s{sW}, 8\ns_cbranch_scc1 K2_GEMM")
    f0 = p.fork()
    va = Alloc(1, 168)
    vL16 = va('l16')
    QM = va('qm',4); QT = [va('qt0',2), va('qt1',2)]
    CM = va('cm',16,4); SS = [va('s0',16,4), va('s1',16,4)]; O = va('o',16,4); P = va('p',8,4)
    NKB = 3
    KM = [va(f'km{i}',4,4) for i in range(4)]
    KT = [va(f'kt{i}',2) for i in range(2)]
    VF = [va(f'vf{i}',8,4) for i in range(4)]
    aK = va('aK'); aT = va('aT'); aV = va('aV'); iV = va('iV')
    T = va('t',8,4)
    sHEAD=20; sMT=21; sKB=22; sVBs=23; sODD=24; sIT=25; sMB_=26; sTB=27
    if not DO_ATT: p.e("s_endpgm")
    p.e(f"""
    v_lshlrev_b32 v{vL16}, 4, v0
    s_lshl_b32 s{sHEAD}, s{sXCD}, 2
    s_lshr_b32 s{sT0}, s{sIDX}, 3
    s_add_u32 s{sHEAD}, s{sHEAD}, s{sT0}
    s_and_b32 s{sT0}, s{sIDX}, 7
    s_lshl_b32 s{sMT}, s{sT0}, 3
    s_add_u32 s{sMT}, s{sMT}, s{sW}
    s_and_b32 s{sODD}, s{sHEAD}, 1
    s_lshr_b32 s{sT0}, s{sHEAD}, 1
    s_mul_i32 s{sT0}, s{sT0}, 9
    s_lshl_b32 s{sT1}, s{sODD}, 2
    s_add_u32 s{sT0}, s{sT0}, s{sT1}
    s_lshl_b32 s{sT2}, s{sT0}, 14
    s_add_u32 s{sKB}, s{sT2}, {QK_OFF + 144*16384}
    s_mul_i32 s{sVBs}, s{sHEAD}, 73728
    s_add_u32 s{sVBs}, s{sVBs}, {VF_OFF}
    s_lshl_b32 s{sMB_}, s{sODD}, 14
    s_xor_b32 s{sTB}, s{sODD}, 1
    s_lshl_b32 s{sTB}, s{sTB}, 16
    """)
    def dma_k(t):
        return mk(f"""s_add_u32 s28, s{sW}, {8*t}
        s_mul_i32 s29, s28, 205
        s_lshr_b32 s29, s29, 10
        s_mul_i32 s30, s29, 5
        s_sub_u32 s28, s28, s30
        s_lshl_b32 s28, s28, 14
        s_lshl_b32 s29, s29, 10
        s_add_u32 s28, s28, s29
        s_mov_b32 m0, s28
        s_add_u32 s28, s28, s{sKB}
        buffer_load_dwordx4 v{vL16}, s[{sWS}:{sWS+3}], s28 offen lds""", tag=f"k{t}")
    def dma_v(t):
        return mk(f"""s_add_u32 s28, s{sW}, {8*t}
        s_lshl_b32 s28, s28, 10
        s_add_u32 m0, s28, {VB}
        s_add_u32 s28, s28, s{sVBs}
        buffer_load_dwordx4 v{vL16}, s[{sWS}:{sWS+3}], s28 offen lds""", tag=f"v{t}")
    p.e(f"""
    v_and_b32 v{T}, 31, v0
    v_lshrrev_b32 v{T+1}, 5, v0
    v_lshlrev_b32 v{T+2}, 3, v{T}
    v_lshl_add_u32 v{T+3}, v{T+1}, 15, v{T+2}     ; h*2*16384 + q*8
    s_lshl_b32 s{sT0}, s{sMT}, 8
    s_add_u32 s{sT0}, s{sT0}, s{sT2}
    s_add_u32 s{sT1}, s{sT0}, s{sMB_}
    buffer_load_dwordx2 {vr(QM,2)}, v{T+3}, s[{sWS}:{sWS+3}], s{sT1} offen
    s_add_u32 s{sT1}, s{sT1}, 16384
    buffer_load_dwordx2 {vr(QM+2,2)}, v{T+3}, s[{sWS}:{sWS+3}], s{sT1} offen
    s_add_u32 s{sT1}, s{sT0}, s{sTB}
    buffer_load_dwordx2 {vr(T+4,2)}, v{T+2}, s[{sWS}:{sWS+3}], s{sT1} offen
    """)
    p.add(dma_k(0)); p.add(dma_v(0)); p.add(dma_k(1))
    p.e(f"""
    v_mov_b32 v{O}, 0x3f803f80
    v_mov_b32 v{O+1}, 0x3f803f80
    v_mov_b32 v{O+2}, 0x3f803f80
    v_mov_b32 v{O+3}, 0x3f803f80
    s_lshl_b32 s{sT1}, s{sW}, 10
    s_add_u32 s{sT1}, s{sT1}, {ONES}
    v_add_u32 v{T+6}, s{sT1}, v{vL16}
    """)
    p.e(f"ds_write_b128 v{T+6}, {vr(O,4)}", tag="ones")
    for t in range(1, 9):
        p.add(dma_v(t)); p.add(dma_k(t+1))
    p.e(f"""
    ; LDS addresses
    v_add_u32 v{aK}, s{sMB_}, v{T+3}
    v_lshlrev_b32 v{aT}, 3, v0
    v_add_u32 v{aT}, s{sTB}, v{aT}
    v_mul_u32_u24 v{aV}, 288, v{T+1}
    v_lshl_add_u32 v{aV}, v{T}, 4, v{aV}
    v_add_u32 v{aV}, {VB}, v{aV}
    v_mov_b32 v{iV}, {UNR*1152}
    v_cmp_gt_u32 vcc, 18, v{T}
    v_mov_b32 v{T+6}, {ONES}
    v_cndmask_b32 v{aV}, v{T+6}, v{aV}, vcc
    v_cndmask_b32 v{iV}, 0, v{iV}, vcc
    ; Q tails: keep own head's dword
    s_cmp_eq_u32 s{sODD}, 0
    s_cselect_b32 s{sT0}, -1, 0
    s_cselect_b32 s{sT1}, 0, -1
    v_and_b32 v{T+4}, s{sT0}, v{T+4}
    v_and_b32 v{T+5}, s{sT1}, v{T+5}
    v_cmp_eq_u32 vcc, 0, v{T+1}
    v_cndmask_b32 v{QT[0]}, 0, v{T+4}, vcc
    v_cndmask_b32 v{QT[0]+1}, 0, v{T+5}, vcc
    v_cndmask_b32 v{QT[1]}, v{T+4}, 0, vcc
    v_cndmask_b32 v{QT[1]+1}, v{T+5}, 0, vcc
    """.replace(f"v_cndmask_b32 v{QT[1]}, v{T+4}, 0, vcc", f"v_cndmask_b32_e64 v{QT[1]}, v{T+4}, 0, vcc").replace(f"v_cndmask_b32 v{QT[1]+1}, v{T+5}, 0, vcc", f"v_cndmask_b32_e64 v{QT[1]+1}, v{T+5}, 0, vcc"))
    stamp(1)
    p.add([wv(["k0","v0","k1"]), wl("ones")]); p.e("s_barrier")
    stamp(2)
    def rdK(t, base=0):
        d = KM[t % 4]
        return mk(f"ds_read_b64 {vr(d,2)}, v{aK} offset:{t*256}\nds_read_b64 {vr(d+2,2)}, v{aK} offset:{16384+t*256}")
    def rdT(t):
        return mk(f"ds_read_b64 {vr(KT[(t//2)%2],2)}, v{aT} offset:{t*256}")
    def rdV(t, j):
        d = VF[t % 4] + 4*j
        return mk(f"ds_read_b128 {vr(d,4)}, v{aV} offset:{t*1152 + j*576}")
    def m1(t, c=None):
        return mk(f"v_mfma_f32_32x32x16_bf16 {vr(SS[t%2],16)}, {vr(KM[t%4],4)}, {vr(QM,4)}, {c or vr(CM,16)}")
    def m2(t):
        return mk(f"v_mfma_f32_32x32x8_bf16 {vr(SS[t%2],16)}, {vr(KT[(t//2)%2],2)}, {vr(QT[t%2],2)}, {vr(SS[t%2],16)}")
    def m3(t, j):
        return mk(f"v_mfma_f32_32x32x16_bf16 {vr(O,16)}, {vr(VF[t%4]+4*j,4)}, {vr(P+4*j,4)}, {vr(O,16)}")
    ex = lambda t, e: mk(f"v_exp_f32 v{SS[t%2]+e}, v{SS[t%2]+e}")
    cv = lambda t, e: mk(f"v_cvt_pk_bf16_f32 v{P+e}, v{SS[t%2]+2*e}, v{SS[t%2]+2*e+1}")
    p.add(rdK(0)+rdT(0)+rdK(1)+rdV(0,0)+rdV(0,1)+rdK(2))
    p.add(m1(0,"0")+m2(0))
    for e in range(16): p.e(f"v_mov_b32 v{O+e}, 0")
    for e in range(4): p.e(f"v_mov_b32 v{P+4+e}, 0")
    for e in range(8): p.e(f"v_mov_b32 v{VF[3]+e}, 0")
    s0 = SS[0]
    p.e(f"v_max3_f32 v{T}, v{s0}, v{s0+1}, v{s0+2}")
    for e in range(3, 15, 2): p.e(f"v_max3_f32 v{T}, v{T}, v{s0+e}, v{s0+e+1}")
    p.e(f"""v_max_f32 v{T}, v{T}, v{s0+15}
    v_mov_b32 v{T+1}, v{T}
    v_permlane32_swap_b32 v{T}, v{T+1}
    v_max_f32 v{T}, v{T}, v{T+1}""")
    for e in range(16): p.e(f"v_sub_f32 v{CM+e}, 0, v{T}")
    for e in range(16): p.e(f"v_sub_f32 v{s0+e}, v{s0+e}, v{T}")
    p.e(f"s_mov_b32 s{sIT}, 0")
    stamp(3)
    p.seg()
    p.e("K2_ALOOP:")
    p.e(f"""s_cmp_lg_u32 s{sIT}, 1
    s_cbranch_scc1 K2_ANB
    s_waitcnt vmcnt(0)
    s_barrier
K2_ANB:""")
    for t in range(UNR):
        st = []
        st += m1(t+1) + rdK(t+3)
        st += flat([ex(t,e) for e in range(0,4)])
        st += m3(t-1+4, 1) + rdV(t+1,0)
        st += flat([ex(t,e) for e in range(4,8)])
        st += m2(t+1) + (rdT(t+2) if t % 2 == 0 else []) + rdV(t+1,1)
        st += flat([cv(t,e) for e in range(0,4)])
        st += flat([ex(t,e) for e in range(8,11)])
        st += m3(t, 0)
        st += flat([ex(t,e) for e in range(11,16)])
        st += flat([cv(t,e) for e in range(4,8)])
        p.add(st)
    p.e(f"""v_add_u32 v{aK}, {UNR*256}, v{aK}
    v_add_u32 v{aT}, {UNR*256}, v{aT}
    v_add_u32 v{aV}, v{iV}, v{aV}
    s_add_u32 s{sIT}, s{sIT}, 1
    s_cmp_lt_u32 s{sIT}, {64//UNR}
    s_cbranch_scc1 K2_ALOOP""")
    p.seg('loop')
    p.add(m3(3,1))
    stamp(4)
    p.e(f"v_add_f32_e64 v{T}, abs(v{O}), abs(v{O+1})")
    for e in range(2,10): p.e(f"v_add_f32_e64 v{T}, v{T}, abs(v{O+e})")
    p.e(f"""v_mov_b32 v{T+1}, 0x7f800000
    v_mov_b32 v{T+2}, {fx(2.0**40)}
    v_cmp_nlt_f32 vcc, v{T}, v{T+1}
    v_cmp_nlt_f32 s[28:29], v{O+10}, v{T+2}
    s_or_b64 vcc, vcc, s[28:29]
    s_cbranch_vccnz K2_SLOW
K2_AFIN:
    v_rcp_f32 v{T}, v{O+10}
    s_mul_i32 s{sT0}, s{sMT}, 36
    s_add_u32 s{sT1}, s{sT0}, s{sHEAD}
    s_lshl_b32 s{sT1}, s{sT1}, 10
    s_add_u32 s{sT1}, s{sT1}, {OF_OFF}""")
    for e in range(10): p.e(f"v_mul_f32 v{O+e}, v{O+e}, v{T}")
    for e in range(5): p.e(f"v_cvt_pk_bf16_f32 v{P+e}, v{O+2*e}, v{O+2*e+1}")
    p.e(f"""buffer_store_dwordx4 {vr(P,4)}, v{vL16}, s[{sWS}:{sWS+3}], s{sT1} offen
    s_lshr_b32 s{sT1}, s{sHEAD}, 3
    s_add_u32 s{sT0}, s{sT0}, s{sT1}
    s_add_u32 s{sT0}, s{sT0}, 32
    s_lshl_b32 s{sT0}, s{sT0}, 10
    s_bfe_u32 s{sT1}, s{sHEAD}, 0x10002
    s_lshl_b32 s{sT1}, s{sT1}, 9
    s_add_u32 s{sT0}, s{sT0}, s{sT1}
    s_and_b32 s{sT1}, s{sHEAD}, 3
    s_lshl_b32 s{sT1}, s{sT1}, 2
    s_add_u32 s{sT0}, s{sT0}, s{sT1}
    s_add_u32 s{sT0}, s{sT0}, {OF_OFF}
    s_mov_b32 exec_hi, 0
    buffer_store_dword v{P+4}, v{vL16}, s[{sWS}:{sWS+3}], s{sT0} offen
    s_mov_b64 exec, -1""")
    stamp(5); stamps_out(8)
    p.e("s_endpgm")
    p.e("K2_SLOW:")
    p.e(f"""s_waitcnt lgkmcnt(0)
    v_subrev_u32 v{aK}, {64*256}, v{aK}
    v_subrev_u32 v{aT}, {64*256}, v{aT}
    v_mul_u32_u24 v{T}, {64//UNR}, v{iV}
    v_sub_u32 v{aV}, v{aV}, v{T}
    v_lshrrev_b32 v{iV}, {(UNR//2).bit_length()-1}, v{iV}
    v_mov_b32 v{T+4}, 0xff800000
    s_mov_b32 s{sIT}, 0""")
    for e in range(16): p.e(f"v_mov_b32 v{O+e}, 0")
    p.seg()
    p.e("K2_SLOOP:")
    p.add(rdT(0))
    for t in range(2):
        s = SS[t]
        p.add(rdK(t)+rdV(t,0)+rdV(t,1))
        p.add(m1(t,"0")+m2(t))
        p.e(f"v_max3_f32 v{T}, v{s}, v{s+1}, v{s+2}")
        for e in range(3, 15, 2): p.e(f"v_max3_f32 v{T}, v{T}, v{s+e}, v{s+e+1}")
        p.e(f"""v_max_f32 v{T}, v{T}, v{s+15}
        v_mov_b32 v{T+1}, v{T}
        v_permlane32_swap_b32 v{T}, v{T+1}
        v_max3_f32 v{T}, v{T}, v{T+1}, v{T+4}
        v_sub_f32 v{T+1}, v{T+4}, v{T}
        v_exp_f32 v{T+1}, v{T+1}
        v_mov_b32 v{T+4}, v{T}""")
        for e in range(16): p.e(f"v_sub_f32 v{s+e}, v{s+e}, v{T}")
        for e in range(16): p.e(f"v_exp_f32 v{s+e}, v{s+e}")
        for e in range(16): p.e(f"v_mul_f32 v{O+e}, v{O+e}, v{T+1}")
        for e in range(8): p.add(cv(t,e))
        p.add(m3(t,0)+m3(t,1))
    p.e(f"""v_add_u32 v{aK}, 512, v{aK}
    v_add_u32 v{aT}, 512, v{aT}
    v_add_u32 v{aV}, v{iV}, v{aV}
    s_add_u32 s{sIT}, s{sIT}, 1
    s_cmp_lt_u32 s{sIT}, 32
    s_cbranch_scc1 K2_SLOOP""")
    p.seg('loop')
    p.e("s_nop 15\ns_branch K2_AFIN")
    natt = va.n
    p.variant(f0)
    p.e("K2_GEMM:")
    if not DO_GEMM: p.e("s_endpgm")
    vb = Alloc(1, 168)
    vH = [vb('h0'), vb('h1')]; vW = vb('w')
    ACC = vb('acc', 96, 4)
    BUF = [vb(f'b{i}', 20, 4) for i in range(3)]
    sGW=20; sSP=21; sNT=22; sM0=23; sHO=24; sWO=25; sIT=26; sEX=27
    p.e(f"""
    s_sub_u32 s{sGW}, s{sW}, 8
    s_cmp_ge_u32 s{sIDX}, 30
    s_cbranch_scc1 K2_WO
    s_cmp_ge_u32 s{sIDX}, 15
    s_cselect_b32 s{sT0}, 1, 0
    s_mul_i32 s{sT1}, s{sT0}, 15
    s_sub_u32 s{sT1}, s{sIDX}, s{sT1}        ; rem
    s_lshl_b32 s{sM0}, s{sXCD}, 1
    s_add_u32 s{sM0}, s{sM0}, s{sT0}
    s_lshl_b32 s{sM0}, s{sM0}, 2
    s_and_b32 s{sT0}, s{sGW}, 2
    s_add_u32 s{sM0}, s{sM0}, s{sT0}
    s_mul_i32 s{sT0}, s{sT1}, 52
    s_lshr_b32 s{sT0}, s{sT0}, 8
    s_mul_i32 s{sT2}, s{sT0}, 5
    s_sub_u32 s{sSP}, s{sT1}, s{sT2}
    s_mul_i32 s{sNT}, s{sT0}, 6
    s_and_b32 s{sT0}, s{sGW}, 1
    s_mul_i32 s{sT0}, s{sT0}, 3
    s_add_u32 s{sNT}, s{sNT}, s{sT0}
    s_mul_i32 s{sT0}, s{sSP}, 57
    s_min_u32 s{sT1}, s{sSP}, 3
    s_add_u32 s{sT0}, s{sT0}, s{sT1}
    s_mul_i32 s{sHO}, s{sM0}, 288
    s_add_u32 s{sHO}, s{sHO}, s{sT0}
    s_lshl_b32 s{sHO}, s{sHO}, 10
    s_add_u32 s{sHO}, s{sHO}, {HF_OFF}
    s_mul_i32 s{sWO}, s{sT0}, 18
    s_add_u32 s{sWO}, s{sWO}, s{sNT}
    s_lshl_b32 s{sWO}, s{sWO}, 10
    s_add_u32 s{sWO}, s{sWO}, {WDF_OFF}
    v_lshlrev_b32 v{vW}, 4, v0
    v_mov_b32 v{vH[0]}, v{vW}
    v_add_u32 v{vH[1]}, {288*1024}, v{vW}
    """)
    def ldH(b, m): return mk(f"buffer_load_dwordx4 {vr(BUF[b]+4*m,4)}, v{vH[m]}, s[{sWS}:{sWS+3}], s{sHO} offen")
    def ldW(b, n): return mk(f"buffer_load_dwordx4 {vr(BUF[b]+8+4*n,4)}, v{vW}, s[{sWS}:{sWS+3}], s{sWO} offen offset:{1024*n}")
    adv = lambda: mk(f"s_add_u32 s{sHO}, s{sHO}, 1024\ns_add_u32 s{sWO}, s{sWO}, 18432")
    def gm(b, m, n):
        a = ACC + 16*(3*m+n)
        return mk(f"v_mfma_f32_32x32x16_bf16 {vr(a,16)}, {vr(BUF[b]+8+4*n,4)}, {vr(BUF[b]+4*m,4)}, {vr(a,16)}")
    for b in range(3):
        p.add(ldH(b,0)+ldW(b,0)+ldW(b,1)+ldW(b,2)+ldH(b,1)+adv())
    for e in range(96): p.e(f"v_mov_b32 v{ACC+e}, 0")
    p.e(f"s_mov_b32 s{sIT}, 0")
    if DO_ATT: p.e("s_barrier")
    stamp(1)
    p.seg()
    p.e("K2_GLOOP:")
    if DO_ATT:
        p.e(f"""s_cmp_lg_u32 s{sIT}, 1
    s_cbranch_scc1 K2_GNB
    s_barrier
K2_GNB:""")
    for b in range(3):
        p.add(gm(b,0,0)+gm(b,0,1)+gm(b,0,2)+ldH(b,0)+gm(b,1,0)+ldW(b,0)+gm(b,1,1)+ldW(b,1)+gm(b,1,2)+ldW(b,2)+ldH(b,1)+adv())
    p.e(f"""s_add_u32 s{sIT}, s{sIT}, 1
    s_cmp_lt_u32 s{sIT}, 19
    s_cbranch_scc1 K2_GLOOP""")
    p.seg('loop')
    p.e(f"s_cmp_ge_u32 s{sSP}, 3\ns_cbranch_scc1 K2_GFIN")
    p.add(flat([gm(0,m,n) for m in range(2) for n in range(3)]))
    p.e("K2_GFIN:\ns_waitcnt vmcnt(0)\ns_nop 7")
    stamp(2)
    p.e(f"""s_lshl_b32 s{sT0}, s{sSP}, 6
    s_add_u32 s{sT0}, s{sT0}, s{sM0}
    s_mul_i32 s{sT0}, s{sT0}, 18
    s_add_u32 s{sT0}, s{sT0}, s{sNT}
    s_lshl_b32 s{sT0}, s{sT0}, 11
    s_add_u32 s{sT0}, s{sT0}, {PART_OFF}""")
    for m in range(2):
        for n in range(3):
            a = ACC + 16*(3*m+n); d = BUF[0] + 8*((3*m+n)%6)
            for e in range(8): p.e(f"v_cvt_pk_bf16_f32 v{d+e}, v{a+2*e}, v{a+2*e+1}")
            p.e(f"s_add_u32 s{sT1}, s{sT0}, {(m*18+n)*2048}")
            p.e(f"buffer_store_dwordx4 {vr(d,4)}, v{vW}, s[{sWS}:{sWS+3}], s{sT1} offen")
            p.e(f"buffer_store_dwordx4 {vr(d+4,4)}, v{vW}, s[{sWS}:{sWS+3}], s{sT1} offen offset:1024")
    stamp(3); stamps_out(8)
    p.e("s_endpgm")
    p.variant(f0)
    sWO_=32; sF=36; sKS=37
    p.e(f"""K2_WO:
    s_load_dwordx2 s[30:31], s[0:1], 16
    s_lshl_b32 s{sF}, s{sXCD}, 1
    s_add_u32 s{sF}, s{sF}, s{sIDX}
    s_sub_u32 s{sF}, s{sF}, 30
    s_lshl_b32 s{sF}, s{sF}, 2
    s_add_u32 s{sF}, s{sF}, s{sGW}
    ; n = 16*((l/4)%2) + 4*((l%32)/8) + l%4
    v_bfe_u32 v2, v0, 2, 1
    v_bfe_u32 v3, v0, 3, 2
    v_and_b32 v4, 3, v0
    v_lshl_add_u32 v4, v3, 2, v4
    v_lshl_add_u32 v4, v2, 4, v4
    v_lshlrev_b32 v4, 1, v4
    v_lshrrev_b32 v5, 5, v0
    v_mul_u32_u24 v6, {4*1152}, v5
    v_add_u32 v6, v6, v4
    v_mul_u32_u24 v7, {4*18*1152}, v5
    v_add_u32 v7, v7, v4
    v_lshlrev_b32 v8, 4, v0
    v_mov_b32 v9, 0xffff
    v_mov_b32 v16, 0
    v_mov_b32 v17, 0
    v_mov_b32 v18, 0
    v_mov_b32 v19, 0
    s_waitcnt lgkmcnt(0)""")
    srd(p, sWO_, 30, 31, D*D*2)
    if DO_ATT: p.e("s_barrier\ns_barrier")
    p.e(f"""K2_WOL:
    s_mul_i32 s{sKS}, s{sF}, 3641
    s_lshr_b32 s{sKS}, s{sKS}, 16
    s_mul_i32 s{sT0}, s{sKS}, 18
    s_sub_u32 s{sT1}, s{sF}, s{sT0}
    s_lshl_b32 s{sT1}, s{sT1}, 6
    s_cmp_ge_u32 s{sKS}, 32
    s_cbranch_scc1 K2_WOT
    s_mul_i32 s{sT0}, s{sT0}, 1152
    s_add_u32 s{sT0}, s{sT0}, s{sT1}""")
    for j in range(8):
        p.e(f"s_add_u32 s{sT2}, s{sT0}, {(8*(j//4)+j%4)*1152}\nbuffer_load_short_d16{'_hi' if j%2 else ''} v{12+j//2+4*(j%2)}, v6, s[{sWO_}:{sWO_+3}], s{sT2} offen")
    p.e(f"""s_branch K2_WOS
K2_WOT:
    s_sub_u32 s{sT0}, s{sKS}, 32
    s_mul_i32 s{sT0}, s{sT0}, {8*18*1152}
    s_add_u32 s{sT0}, s{sT0}, s{sT1}""")
    for j in range(8):
        p.e(f"s_add_u32 s{sT2}, s{sT0}, {((j//2)*18+16+j%2)*1152}\nbuffer_load_short_d16{'_hi' if j%2 else ''} v{12+j//2+4*(j%2)}, v7, s[{sWO_}:{sWO_+3}], s{sT2} offen")
    p.e(f"""K2_WOS:
    s_lshl_b32 s{sT0}, s{sF}, 10
    s_add_u32 s{sT0}, s{sT0}, {WOF_OFF}
    s_waitcnt vmcnt(0)
    v_and_or_b32 v12, v12, v9, v16
    v_and_or_b32 v13, v13, v9, v17
    v_and_or_b32 v14, v14, v9, v18
    v_and_or_b32 v15, v15, v9, v19
    buffer_store_dwordx4 v[12:15], v8, s[{sWS}:{sWS+3}], s{sT0} offen
    s_add_u32 s{sF}, s{sF}, 64
    s_waitcnt vmcnt(0)
    s_cmp_lt_u32 s{sF}, 648
    s_cbranch_scc1 K2_WOL""")
    p.e("K2_END:\ns_endpgm")
    return p, max(natt, vb.n)

def kernels():
    import os
    global STAMP, DO_ATT, DO_GEMM
    if os.environ.get('STAMP'): STAMP = True
    if os.environ.get('NOATT'): DO_ATT = False
    if os.environ.get('NOGEMM'): DO_GEMM = False
    p, n = gen_k2()
    return [("k2_kernel", p, 256, 768, K2_LDS, n, None)]
```

```python
from common import *
K3_LDS = 6*5*4096
def gen_k3():
    p = Prog()
    sWS=8; sX=12; sO=16; sW=20; sT0=21; sT1=22; sT2=23; sM0=24; sN0=25; sOO=26; sWO=27
    va = Alloc(1)
    vL = va('l16'); vL2 = va('l16b'); vXO = va('xo'); vA = va('a')
    ACC = va('acc', 96, 4)
    B = [va(f'b{i}', 20, 4) for i in range(5)]
    PT = va('pt', 40, 4); XX = va('xx', 8, 4)
    p.e(f"""
    s_cmp_ge_u32 s2, 192
    s_cbranch_scc1 K3_END
    s_load_dwordx2 s[28:29], s[0:1], 72
    s_load_dwordx2 s[30:31], s[0:1], 0
    s_load_dwordx2 s[32:33], s[0:1], 56
    v_lshrrev_b32 v1, 6, v0
    v_and_b32 v0, 63, v0
    v_readfirstlane_b32 s{sW}, v1
    ; wg -> xcd = wg&7, idx = wg>>3 (0..23): m64 = xcd*4 + idx/6, nb = idx%6
    s_lshr_b32 s{sT0}, s2, 3
    s_mul_i32 s{sT1}, s{sT0}, 43
    s_lshr_b32 s{sT1}, s{sT1}, 8
    s_mul_i32 s{sT2}, s{sT1}, 6
    s_sub_u32 s{sN0}, s{sT0}, s{sT2}
    s_mul_i32 s{sN0}, s{sN0}, 3
    s_and_b32 s{sM0}, s2, 7
    s_lshl_b32 s{sM0}, s{sM0}, 2
    s_add_u32 s{sM0}, s{sM0}, s{sT1}
    s_lshl_b32 s{sM0}, s{sM0}, 1
    v_lshlrev_b32 v{vL}, 4, v0
    v_add_u32 v{vL2}, {36*1024}, v{vL}
    s_mul_i32 s{sT0}, s{sW}, 6
    s_mul_i32 s{sOO}, s{sM0}, 36
    s_add_u32 s{sOO}, s{sOO}, s{sT0}
    s_lshl_b32 s{sOO}, s{sOO}, 10
    s_add_u32 s{sOO}, s{sOO}, {OF_OFF}
    s_mul_i32 s{sWO}, s{sT0}, 18
    s_add_u32 s{sWO}, s{sWO}, s{sN0}
    s_lshl_b32 s{sWO}, s{sWO}, 10
    s_add_u32 s{sWO}, s{sWO}, {WOF_OFF}
    ; own tile: m = w/3, n = w%3
    s_cmp_ge_u32 s{sW}, 3
    s_cselect_b32 s{sT0}, 1, 0
    s_mul_i32 s{sT1}, s{sT0}, 3
    s_sub_u32 s{sT1}, s{sW}, s{sT1}
    s_add_u32 s{sT0}, s{sT0}, s{sM0}        ; mt
    s_add_u32 s{sT1}, s{sT1}, s{sN0}        ; nt
    s_mul_i32 s{sT2}, s{sT0}, 18
    s_add_u32 s{sT2}, s{sT2}, s{sT1}
    s_lshl_b32 s{sT2}, s{sT2}, 11
    s_add_u32 s{sT2}, s{sT2}, {PART_OFF}
    ; x/out offset: (mt*32 + l%32)*1152 + nt*64 + h*32
    s_mul_i32 s{sT0}, s{sT0}, {32*1152}
    s_lshl_b32 s{sT1}, s{sT1}, 6
    s_add_u32 s{sT0}, s{sT0}, s{sT1}
    v_and_b32 v{vA}, 31, v0
    v_mul_u32_u24 v{vXO}, 1152, v{vA}
    v_lshrrev_b32 v{vA}, 5, v0
    v_lshl_add_u32 v{vXO}, v{vA}, 5, v{vXO}
    v_add_u32 v{vXO}, s{sT0}, v{vXO}
    s_waitcnt lgkmcnt(0)
    """)
    srd(p, sWS, 28, 29, WS_BYTES); srd(p, sX, 30, 31, S*D*2); srd(p, sO, 32, 33, S*D*2)
    def ld(b):
        o = mk(f"buffer_load_dwordx4 {vr(b,4)}, v{vL}, s[{sWS}:{sWS+3}], s{sOO} offen")
        for n in range(3): o += mk(f"buffer_load_dwordx4 {vr(b+8+4*n,4)}, v{vL}, s[{sWS}:{sWS+3}], s{sWO} offen offset:{1024*n}")
        o += mk(f"buffer_load_dwordx4 {vr(b+4,4)}, v{vL2}, s[{sWS}:{sWS+3}], s{sOO} offen")
        o += mk(f"s_add_u32 s{sOO}, s{sOO}, 1024\ns_add_u32 s{sWO}, s{sWO}, 18432")
        return o
    def mm(b, first):
        o = []
        for m in range(2):
            for n in range(3):
                a = ACC+16*(3*m+n)
                o += mk(f"v_mfma_f32_32x32x16_bf16 {vr(a,16)}, {vr(b+8+4*n,4)}, {vr(b+4*m,4)}, {'0' if first else vr(a,16)}")
        return o
    for i in range(5): p.add(ld(B[i]))
    for sp in range(5):
        p.e(f"buffer_load_dwordx4 {vr(PT+8*sp,4)}, v{vL}, s[{sWS}:{sWS+3}], s{sT2} offen\nbuffer_load_dwordx4 {vr(PT+8*sp+4,4)}, v{vL}, s[{sWS}:{sWS+3}], s{sT2} offen offset:1024\ns_add_u32 s{sT2}, s{sT2}, {64*18*2048}")
    p.e(f"buffer_load_dwordx4 {vr(XX,4)}, v{vXO}, s[{sX}:{sX+3}], 0 offen\nbuffer_load_dwordx4 {vr(XX+4,4)}, v{vXO}, s[{sX}:{sX+3}], 0 offen offset:16")
    p.add(mm(B[0], True)); p.add(ld(B[0]))
    for i in range(1,5): p.add(mm(B[i], False))
    p.add(mm(B[0], False))
    Fv = B[1]
    msk = B[2]
    p.e(f"v_mov_b32 v{msk}, 0xffff0000")
    for t in range(6):
        p.e(f"""s_cmp_eq_u32 s{sW}, {t}
        s_cbranch_scc1 K3_SK{t}
        s_add_u32 s{sT0}, s{sW}, {5-t}
        s_cmp_ge_u32 s{sT0}, 6
        s_cselect_b32 s{sT1}, 6, 0
        s_sub_u32 s{sT0}, s{sT0}, s{sT1}
        s_lshl_b32 s{sT0}, s{sT0}, 12
        s_add_u32 s{sT0}, s{sT0}, {t*5*4096}
        v_add_u32 v{vA}, s{sT0}, v{vL}""")
        for q in range(4): p.e(f"ds_write_b128 v{vA}, {vr(ACC+16*t+4*q,4)} offset:{1024*q}")
        p.e(f"s_branch K3_SN{t}\nK3_SK{t}:")
        for e in range(16): p.e(f"v_mov_b32 v{B[3]+e}, v{ACC+16*t+e}")
        p.e(f"K3_SN{t}:")
    SA = B[3]
    for e in range(8):
        p.e(f"v_lshlrev_b32 v{Fv+2*e}, 16, v{PT+e}\nv_and_b32 v{Fv+2*e+1}, v{msk}, v{PT+e}")
    t0 = B[2]+2
    for sp in range(1,5):
        for e in range(8):
            p.e(f"v_lshlrev_b32 v{t0}, 16, v{PT+8*sp+e}\nv_and_b32 v{t0+1}, v{msk}, v{PT+8*sp+e}\nv_add_f32 v{Fv+2*e}, v{Fv+2*e}, v{t0}\nv_add_f32 v{Fv+2*e+1}, v{Fv+2*e+1}, v{t0+1}")
    p.e(f"""s_mul_i32 s{sT0}, s{sW}, {5*4096}
    v_add_u32 v{vA}, s{sT0}, v{vL}
    s_waitcnt lgkmcnt(0)
    s_barrier""")
    for r in range(5):
        for q in range(4): p.e(f"ds_read_b128 {vr(ACC+16*r+4*q,4)}, v{vA} offset:{r*4096+1024*q}")
    G = B[4]
    for e in range(16): p.e(f"v_mul_f32 v{G+e}, {fx(-LOG2E)}, v{Fv+e}")
    for e in range(16): p.e(f"v_exp_f32 v{G+e}, v{G+e}")
    for e in range(16): p.e(f"v_add_f32 v{G+e}, 1.0, v{G+e}")
    for e in range(16): p.e(f"v_rcp_f32 v{G+e}, v{G+e}")
    for e in range(16): p.e(f"v_mul_f32 v{G+e}, v{G+e}, v{Fv+e}")
    for e in range(8):
        p.e(f"v_lshlrev_b32 v{Fv+2*e}, 16, v{XX+e}\nv_and_b32 v{Fv+2*e+1}, v{msk}, v{XX+e}")
    for r in range(5):
        for e in range(16): p.e(f"v_add_f32 v{SA+e}, v{SA+e}, v{ACC+16*r+e}")
    for e in range(16): p.e(f"v_fmac_f32 v{Fv+e}, v{SA+e}, v{G+e}")
    for e in range(8): p.e(f"v_cvt_pk_bf16_f32 v{XX+e}, v{Fv+2*e}, v{Fv+2*e+1}")
    p.e(f"buffer_store_dwordx4 {vr(XX,4)}, v{vXO}, s[{sO}:{sO+3}], 0 offen\nbuffer_store_dwordx4 {vr(XX+4,4)}, v{vXO}, s[{sO}:{sO+3}], 0 offen offset:16")
    p.e("K3_END:\ns_endpgm")
    return p, va.n
def kernels():
    p, n = gen_k3()
    return [("k3_kernel", p, 192, 384, K3_LDS, n, None)]
```

```python
import sys, importlib
sys.path.insert(0, 'gen')
from common import *
import k1
NAME = "recurrent_scan__softmax_full_mha__geglu_ffn__prompt"
def build(path, kernels):
    hdr = open(f"cdna_kernels/{NAME}.s.ref").read().split('\n')
    hdr = [l for l in hdr if l.startswith(';') and '@launch' not in l and 'Override' not in l and 'grid=ceil' not in l]
    out = '\n'.join(hdr) + '\n'
    for (name, prog, grid, block, lds, vg, acc) in kernels:
        out += f"; @launch kernel={name} grid=({grid},1,1) block=({block},1,1) lds={lds}\n"
    out += '.amdgcn_target "amdgcn-amd-amdhsa--gfx950"\n.text\n'
    for (name, prog, grid, block, lds, vg, acc) in kernels:
        out += kernel_text(name, prog)
    out += '.section .rodata,"a"\n'
    for (name, prog, grid, block, lds, vg, acc) in kernels:
        out += '.p2align 6\n' + kd(name, vg, 96, acc)
    open(path, 'w').write(out)
if __name__ == '__main__':
    ks = []
    import os
    if os.environ.get('STAMP'): k1.STAMP = True
    p1 = k1.gen_k1(); ks.append(("k1_kernel", p1, 256, 512, k1.K1_LDS, k1.K1_VGPRS, None))
    try:
        import k2
        ks += k2.kernels()
    except ImportError: pass
    try:
        import k3
        ks += k3.kernels()
    except ImportError: pass
    path = sys.argv[1] if len(sys.argv) > 1 else f"cdna_kernels/{NAME}.s"
    build(path, ks)
    print("vgprs", [(k[0], k[5]) for k in ks])
```
